```python
import torch

def _softmax(x, axis=-1):
    return torch.softmax(x, dim=axis)
def _gelu(x):
    return torch.nn.functional.gelu(x, approximate="tanh")
def _silu(x):
    return torch.nn.functional.silu(x)
def _sigmoid(x):
    return torch.sigmoid(x)
def _layernorm(x, axis=-1, eps=1e-5):
    m = x.mean(dim=axis, keepdim=True)
    v = x.var(dim=axis, keepdim=True, unbiased=False)
    return (x - m) / torch.sqrt(v + eps)
def _scatter_add(tgt, idx, src, axis=0):
    return tgt.clone().index_add_(axis, idx, src)
def _segment_sum(src, seg, n):
    out = torch.zeros((n,) + src.shape[1:], dtype=src.dtype)
    return out.index_add_(0, seg, src)
def _pad(x, pw):
    flat = tuple(v for pair in reversed(pw) for v in pair)
    return torch.nn.functional.pad(x, flat)

kernel_name = 'interleave_layers__grouped_kv_mqa__moe_arch_mod__prompt'

def setup_inputs():

    _w = (lambda a: (lambda t: t.to(torch.bfloat16) if t.is_floating_point() else t)(torch.as_tensor(a)))
    def _A_setup():
        B, S, D, H = 1, 2048, 576, 32
        Dh = D // H
        return {
            "x": _w((lambda *s: torch.randn(*s, dtype=torch.bfloat16) * 0.05)(B, S, D)),
            "wq": _w((lambda *s: torch.randn(*s, dtype=torch.bfloat16) * 0.05)(D, H * Dh)),
            "wk": _w((lambda *s: torch.randn(*s, dtype=torch.bfloat16) * 0.05)(D, Dh)),
            "wv": _w((lambda *s: torch.randn(*s, dtype=torch.bfloat16) * 0.05)(D, Dh)),
            "wo": _w((lambda *s: torch.randn(*s, dtype=torch.bfloat16) * 0.05)(H * Dh, D)),
        }
    _A_in = _A_setup()

    def _B_setup():
        B, S, D, F, C = 1, 2048, 576, 4608, 1
        return {
            "x": _w((lambda *s: torch.randn(*s, dtype=torch.bfloat16) * 0.05)(B, S, D)),
            "w_r": _w((lambda *s: torch.randn(*s, dtype=torch.bfloat16) * 0.05)(D)),
            "w_gate": _w((lambda *s: torch.randn(*s, dtype=torch.bfloat16) * 0.05)(D, F)),
            "w_up": _w((lambda *s: torch.randn(*s, dtype=torch.bfloat16) * 0.05)(D, F)),
            "w_down": _w((lambda *s: torch.randn(*s, dtype=torch.bfloat16) * 0.05)(F, D)),
        }
    _B_in = _B_setup()

    return {
        "A_x": _A_in["x"],
        "A_wq": _A_in["wq"],
        "A_wk": _A_in["wk"],
        "A_wv": _A_in["wv"],
        "A_wo": _A_in["wo"],
        "B_x": _B_in["x"],
        "B_w_r": _B_in["w_r"],
        "B_w_gate": _B_in["w_gate"],
        "B_w_up": _B_in["w_up"],
        "B_w_down": _B_in["w_down"],
    }

def reference(A_x, A_wq, A_wk, A_wv, A_wo, B_x, B_w_r, B_w_gate, B_w_up, B_w_down):
    def _A_ref(x, wq, wk, wv, wo):
        B, S, D = x.shape
        H = 32
        Dh = D // H
        q = (lambda x, *d: x.permute(*d))((x @ wq).reshape(B, S, H, Dh), 0, 2, 1, 3)
        k = x @ wk
        v = x @ wv
        scores = torch.einsum("bhqd,bkd->bhqk", q, k) * (Dh ** -0.5)
        p = _softmax(scores, axis=-1)
        o = torch.einsum("bhqk,bkd->bhqd", p, v)
        return (lambda x, *d: x.permute(*d))(o, 0, 2, 1, 3).reshape(B, S, H * Dh) @ wo

    def _B_ref(x, w_r, w_gate, w_up, w_down):
        B, S, D = x.shape
        C = 1
        r = x @ w_r
        idx = torch.argsort(-r, axis=-1)[:, :C]
        idx_e = (lambda x, n, axis: torch.repeat_interleave(x, n, dim=axis))(idx.reshape(B, C, 1), D, axis=2)
        x_sel = (lambda x, i, axis: torch.take_along_dim(x, i, dim=axis))(x, idx_e, axis=1)
        g = _silu(x_sel @ w_gate)
        u = x_sel @ w_up
        y = (g * u) @ w_down
        r_sel = _sigmoid((lambda x, i, axis: torch.take_along_dim(x, i, dim=axis))(r, idx, axis=1))
        y = y * r_sel.reshape(B, C, 1)
        b_off = (torch.arange(B) * S).reshape(B, 1)
        flat_idx = (idx + b_off).reshape(B * C)
        zero = (x * 0.0).reshape(B * S, D)
        upd = _scatter_add(zero, flat_idx, y.reshape(B * C, D), axis=0)
        return x + upd.reshape(B, S, D)

    x = A_x
    x = x + _A_ref(_layernorm(x, axis=-1), A_wq, A_wk, A_wv, A_wo)
    x = x + _B_ref(_layernorm(x, axis=-1), B_w_r, B_w_gate, B_w_up, B_w_down)
    x = x + _A_ref(_layernorm(x, axis=-1), A_wq, A_wk, A_wv, A_wo)
    x = x + _B_ref(_layernorm(x, axis=-1), B_w_r, B_w_gate, B_w_up, B_w_down)
    return x
```

```python
import re

TRANS = ("v_exp_f32", "v_log_f32", "v_rcp_f32", "v_rsq_f32", "v_sqrt_f32", "v_sin_f32", "v_cos_f32", "v_rcp_iflag_f32")
REG_RE = re.compile(r"^(-|\|)?(abs\()?([vsa])(\d+|\[(\d+):(\d+)\])\)?\|?$")


def regs_of(op):
    op = op.strip()
    if op in ("vcc",):
        return {("s", "vcc")}
    if op in ("vcc_lo", "vcc_hi"):
        return {("s", "vcc")}
    if op == "exec":
        return {("s", "exec")}
    if op == "m0":
        return {("s", "m0")}
    m = REG_RE.match(op)
    if not m:
        return set()
    k = m.group(3)
    if m.group(5) is not None:
        return {(k, i) for i in range(int(m.group(5)), int(m.group(6)) + 1)}
    return {(k, int(m.group(4)))}


def split_ops(s):
    out, depth, cur = [], 0, ""
    for ch in s:
        if ch in "[(":
            depth += 1
        if ch in "])":
            depth -= 1
        if ch == "," and depth == 0:
            out.append(cur.strip()); cur = ""
        else:
            cur += ch
    if cur.strip():
        out.append(cur.strip())
    return out


class Ins:
    def __init__(self, text):
        self.text = text
        t = text.split(";")[0].strip()
        parts = t.split(None, 1)
        self.op = parts[0]
        rest = parts[1] if len(parts) > 1 else ""
        ops = split_ops(rest)
        self.mods = ""
        if ops:
            w = ops[-1].split(None, 1)
            ops[-1] = w[0]
            self.mods = w[1] if len(w) > 1 else ""
        self.ops = ops
        op = self.op
        self.is_mfma = op.startswith("v_mfma")
        self.is_valu = op.startswith("v_") and not self.is_mfma
        self.is_salu = op.startswith("s_")
        self.is_ds = op.startswith("ds_")
        self.is_vmem = op.startswith(("global_", "buffer_", "flat_"))
        self.is_trans = any(op.startswith(x) for x in TRANS)
        self.is_dot = op.startswith("v_dot")
        self.is_dpp = "_dpp" in op or "row_" in self.mods or "quad_perm" in self.mods
        self.is_sdwa = "_sdwa" in op
        self.is_permlane = op.startswith("v_permlane")
        self.is_readlane = op.startswith(("v_readlane", "v_readfirstlane"))
        self.wr, self.rd = set(), set()
        self.srcA = self.srcB = self.srcC = set()
        self.passes = 0
        self.states = 1
        R = [regs_of(o) for o in ops]
        if op == "s_nop":
            self.states = int(ops[0], 0) + 1
        elif self.is_mfma:
            self.wr = R[0]; self.srcA = R[1]; self.srcB = R[2]; self.srcC = R[3]
            self.rd = R[1] | R[2] | R[3]
            self.passes = 8 if "32x32" in op else (4 if "16x16" in op else 2)
        elif self.is_valu:
            if op.startswith("v_cmp"):
                self.wr = R[0]; self.rd = set().union(*R[1:])
                if op.startswith("v_cmpx"):
                    self.wr |= {("s", "exec")}
            elif self.is_permlane:
                self.wr = R[0] | R[1]; self.rd = R[0] | R[1]
            elif op.startswith(("v_add_co", "v_sub_co", "v_addc_co", "v_subb_co", "v_subrev_co", "v_mad_u64_u32")):
                self.wr = R[0] | R[1]; self.rd = set().union(*R[2:])
            else:
                self.wr = R[0]; self.rd = set().union(*R[1:]) if len(R) > 1 else set()
                if op.startswith(("v_fmac", "v_dot2c", "v_writelane")) or self.is_dpp or "PRESERVE" in self.mods:
                    self.rd |= R[0]
                if op.startswith("v_cndmask") and len(ops) == 3:
                    self.rd |= {("s", "vcc")}
        elif self.is_ds:
            if op.startswith(("ds_read", "ds_bpermute", "ds_permute", "ds_swizzle")) or "_rtn" in op:
                self.wr = R[0]; self.rd = set().union(*R[1:])
            else:
                self.rd = set().union(*R)
        elif self.is_vmem:
            lds = "_lds_" in op or re.search(r"\blds\b", self.mods) is not None
            self.is_ldsdma = lds
            if op.startswith(("buffer_wbl2", "buffer_inv")):
                pass
            elif lds:
                self.rd = set().union(*R) | {("s", "m0")}
            elif "_load" in op:
                self.wr = R[0]; self.rd = set().union(*R[1:])
                if "d16" in op:
                    self.rd |= R[0]
            elif "atomic" in op and re.search(r"\bsc0\b", self.mods) and op.startswith("global"):
                self.wr = R[0]; self.rd = set().union(*R[1:])
            else:
                self.rd = set().union(*R)
            self.wide_data = set()
            if "store" in op and ("x3" in op or "x4" in op):
                self.wide_data = R[1] if op.startswith(("global", "flat")) else R[0]
        elif self.is_salu:
            if op.startswith(("s_cmp", "s_cbranch", "s_branch", "s_waitcnt", "s_barrier", "s_endpgm", "s_sleep", "s_setprio", "s_bitcmp")):
                self.rd = set().union(*R) if R else set()
            else:
                self.wr = R[0] if R else set()
                self.rd = set().union(*R[1:]) if len(R) > 1 else set()
                if "saveexec" in op:
                    self.wr |= {("s", "exec")}


def need(p, c):
    n = 0
    vw = {r for r in p.wr if r[0] in "va"}
    sw = {r for r in p.wr if r[0] == "s"}
    if p.is_valu:
        if c.is_mfma and vw & c.rd:
            n = max(n, 3 if p.is_dot else 2)
        if p.is_trans and (c.is_valu and not c.is_trans or c.is_vmem or c.is_ds) and vw & c.rd:
            n = max(n, 1)
        if (c.is_dpp or c.is_permlane) and c.is_valu and vw & c.rd:
            n = max(n, 2)
        if c.is_readlane and vw & c.rd:
            n = max(n, 1)
        if sw:
            if c.is_valu and sw & c.rd:
                n = max(n, 4 if c.op.startswith(("v_readlane", "v_writelane")) else 2)
            if c.is_vmem and sw & c.rd:
                n = max(n, 5)
            if ("s", "exec") in sw and (c.is_mfma or c.is_readlane or c.is_permlane):
                n = max(n, 4)
            if ("s", "exec") in sw and c.is_dpp:
                n = max(n, 5)
        if p.is_sdwa and c.is_valu and vw & (c.rd | c.wr):
            n = max(n, 1)
        if p.is_dot and (c.is_valu or c.is_vmem or c.is_ds) and vw & (c.rd | c.wr):
            if c.op == p.op:
                ab = set()
                for o in c.ops[1:3]:
                    ab |= regs_of(o)
                if vw & ab:
                    n = max(n, 3)
            else:
                n = max(n, 3)
    if p.is_mfma:
        big = {2: 5, 4: 8, 8: 12}[p.passes]
        if c.is_mfma:
            if vw & (c.srcA | c.srcB):
                n = max(n, big)
            if vw & c.srcC:
                if c.srcC == vw and c.passes == p.passes and p.passes >= 4:
                    pass
                else:
                    n = max(n, {2: 4, 4: 6, 8: 10}[p.passes])
            elif vw & c.wr:
                n = max(n, {2: 4, 4: 6, 8: 10}[p.passes])
        elif (c.is_valu or c.is_vmem or c.is_ds) and vw & (c.rd | c.wr):
            n = max(n, big)
        if c.is_valu and p.srcC & c.wr:
            n = max(n, {2: 1, 4: 3, 8: 7}[p.passes])
    if p.is_salu and ("s", "m0") in sw and c.is_vmem and getattr(c, "is_ldsdma", False):
        n = max(n, 1)
    if p.is_vmem and getattr(p, "wide_data", None):
        if p.wide_data & c.wr:
            n = max(n, 2 if c.is_valu else 1)
    return n


class Asm:
    def __init__(self):
        self.lines = []
        self.hist = []
        self.nops = 0

    def raw(self, s):
        self.lines.append(s)

    def label(self, name, keep=True):
        self.lines.append(f"{name}:")

    def reset(self):
        self.hist = []

    def __call__(self, text):
        for t in text.strip().split("\n"):
            t = t.strip()
            if not t:
                continue
            if t.startswith(";") or t.startswith("."):
                self.lines.append("    " + t)
                continue
            if t.endswith(":"):
                self.lines.append(t)
                continue
            ins = Ins(t)
            dist = 0
            pad = 0
            for p in reversed(self.hist):
                nd = need(p, ins)
                if nd > dist:
                    pad = max(pad, nd - dist)
                dist += p.states
                if dist >= 20:
                    break
            while pad > 0:
                k = min(pad, 16)
                nop = Ins(f"s_nop {k-1}")
                self.hist.append(nop)
                self.lines.append(f"    s_nop {k-1}")
                self.nops += 1
                pad -= k
            self.hist.append(ins)
            if len(self.hist) > 64:
                self.hist = self.hist[-32:]
            self.lines.append("    " + t)

    def text(self):
        return "\n".join(self.lines) + "\n"


def vr(a, n=1):
    return f"v{a}" if n == 1 else f"v[{a}:{a+n-1}]"


def sr(a, n=1):
    return f"s{a}" if n == 1 else f"s[{a}:{a+n-1}]"
```

```python
import sys, struct, math
from asmlib import Asm, vr, sr

NAME = "interleave_layers__grouped_kv_mqa__moe_arch_mod__prompt"
KA_X, KA_WQ, KA_WK, KA_WV, KA_WO, KA_BX, KA_WR, KA_WG, KA_WU, KA_WD, KA_OUT, KA_DBG, KA_WS = [8 * i for i in range(13)]
WS_Q = 0
WS_O = 0x240000
WS_X1 = 0x480000
WS_X3 = 0x6C0000
WS_KV = 0x900000
WS_KN = 0x928000
WS_ST = [0x930000, 0x938000]
WS_Y = [0x940000, 0x948000]
WS_ZERO = 0x930000
WS_MISC = 0x950000
WS_X2F = 0x952000
NREP = 8
KVCH = 18944
KV_BYTES = 8 * KVCH


def f32(x):
    return "0x%08x" % struct.unpack("<I", struct.pack("<f", x))[0]


QSCALE = (18 ** -0.5) * math.log2(math.e)
EPS = 1e-5
kernels = []


def begin(a, name):
    a.raw(".text")
    a.raw(f".globl {name}")
    a.raw(".p2align 8")
    a.raw(f".type {name},@function")
    a.raw(f"{name}:")
    a.reset()


def rne(a, d, s):
    a(f"v_cvt_pk_bf16_f32 v{d}, v{s}, v{s}")
    a(f"v_and_b32 v{d}, 0xffff0000, v{d}")


def ln_consts(a, s1, s2, mu, var, mb, db, t):
    a(f"v_mul_f32 v{mu}, {f32(1/576)}, v{s1}")
    a(f"v_mul_f32 v{var}, {f32(1/576)}, v{s2}")
    a(f"v_fma_f32 v{var}, -v{mu}, v{mu}, v{var}")
    a(f"v_max_f32 v{var}, 0, v{var}")
    ln_round(a, mu, var, mb, db, t)


def ln_round(a, mu, var, mb, db, t):
    rne(a, mb, mu)
    rne(a, t, var)
    a(f"v_add_f32 v{t}, {f32(EPS)}, v{t}")
    rne(a, t, t)
    a(f"v_sqrt_f32 v{t}, v{t}")
    rne(a, db, t)


def allred_kq(a, x, t, op="v_add_f32"):
    a(f"v_mov_b32 v{t}, v{x}")
    a(f"v_permlane16_swap_b32 v{x}, v{t}")
    a(f"{op} v{x}, v{x}, v{t}")
    a(f"v_mov_b32 v{t}, v{x}")
    a(f"v_permlane32_swap_b32 v{x}, v{t}")
    a(f"{op} v{x}, v{x}, v{t}")


def allred_row(a, x, op="v_add_f32"):
    for r in (8, 4, 2, 1):
        a(f"{op}_dpp v{x}, v{x}, v{x} row_ror:{r} row_mask:0xf bank_mask:0xf")


G_LDS_CS = 0
G_LDS_PX = 320
G_LDS_RED = 1472
G_LDS_W = 1536
G_LDS = 93696


def gemm_kernel(a, name, kind, layer):
    qkv = kind == "qkv"
    L = name
    begin(a, name)
    XF, WF, ACC = 24, 96, 136
    RES, WRV, STV = 156, 166, 176
    ONES = 20
    a(f"s_cmp_ge_u32 s2, 256")
    a(f"s_cbranch_scc1 {L}_end")
    a(f"s_load_dwordx2 s[16:17], s[0:1], {KA_WS}")
    if qkv:
        a(f"s_load_dwordx2 s[10:11], s[0:1], {KA_WQ}")
        a(f"s_load_dwordx4 s[12:15], s[0:1], {KA_WK}")
    else:
        a(f"s_load_dwordx2 s[10:11], s[0:1], {KA_WO}")
    a(f"s_load_dwordx2 s[18:19], s[0:1], {KA_WR}")
    a(f"s_load_dwordx2 s[22:23], s[0:1], {KA_X}")
    a("s_and_b32 s3, s2, 31")
    a("s_lshr_b32 s4, s2, 5")
    a("v_and_b32 v1, 63, v0")
    a("v_lshrrev_b32 v11, 6, v0")
    a("v_readfirstlane_b32 s5, v11")
    a("v_lshrrev_b32 v2, 4, v1")
    a("v_and_b32 v3, 15, v0")
    a("v_mul_u32_u24 v11, 6554, v0")
    a("v_lshrrev_b32 v11, 16, v11")
    a("v_mul_u32_u24 v12, 10, v11")
    a("v_sub_u32 v12, v0, v12")
    a("v_and_b32 v13, 0x13, v11")
    a("v_and_b32 v14, 4, v11")
    a("v_lshl_or_b32 v13, v14, 1, v13")
    a("v_and_b32 v14, 8, v11")
    a("v_lshrrev_b32 v14, 1, v14")
    a("v_or_b32 v13, v13, v14")
    if not qkv:
        a("v_min_u32 v12, 8, v12")
    a(f"s_mul_i32 s7, s4, {160 if qkv else 144}")
    a("v_mul_u32_u24 v14, 1152, v13")
    a("v_lshl_add_u32 v14, v12, 4, v14")
    a("v_add_u32 v14, s7, v14")
    a("v_mov_b32 v6, 36864")
    a("v_mov_b32 v7, 0")
    a("v_lshrrev_b32 v15, 1, v2")
    a("v_lshlrev_b32 v15, 4, v15")
    a("v_and_b32 v16, 1, v2")
    a("v_lshl_add_u32 v15, v16, 2, v15")
    a("v_lshrrev_b32 v16, 2, v3")
    a("v_add_u32 v15, v15, v16")
    a("v_mul_u32_u24 v9, 160, v15")
    a("v_and_b32 v16, 3, v3")
    a("v_lshl_add_u32 v9, v16, 3, v9")
    a(f"v_add_u32 v9, {G_LDS_W}, v9")
    a("v_add_u32 v10, 46080, v9")
    a("s_lshl_b32 s24, s3, 6")
    a("s_lshl_b32 s25, s5, 4")
    a("s_add_u32 s24, s24, s25")
    a("v_add_u32 v17, s24, v3")
    a("v_mul_u32_u24 v18, 1152, v17")
    a("v_lshl_add_u32 v8, v2, 4, v18")
    a("s_lshl_b32 s6, s5, 10")
    a(f"s_add_u32 s6, s6, {G_LDS_W}")
    a("s_waitcnt lgkmcnt(0)")
    if qkv and layer == 0:
        a("s_mov_b64 s[8:9], s[22:23]")
    else:
        off = WS_X1 if qkv else WS_O
        a(f"s_add_u32 s8, s16, {off}")
        a("s_addc_u32 s9, s17, 0")
    a("v_mov_b32 v5, s11")
    a("v_add_co_u32 v4, vcc, s10, v14")
    a("v_addc_co_u32 v5, vcc, 0, v5, vcc")
    if qkv:
        a("s_cmp_lg_u32 s4, 7")
        a(f"s_cbranch_scc1 {L}_addr_done")
        a("v_cmp_le_u32 vcc, 6, v12")
        a("v_mov_b32 v14, s12")
        a("v_mov_b32 v15, s14")
        a("v_cndmask_b32 v14, v14, v15, vcc")
        a("v_mov_b32 v15, s13")
        a("v_mov_b32 v16, s15")
        a("v_cndmask_b32 v15, v15, v16, vcc")
        a("v_add_u32 v16, -2, v12")
        a("v_and_b32 v16, 3, v16")
        a("v_lshlrev_b32 v16, 4, v16")
        a("v_min_u32 v16, 20, v16")
        a("v_mad_u32_u24 v16, v13, 36, v16")
        a("v_add_co_u32 v14, vcc, v14, v16")
        a("v_addc_co_u32 v15, vcc, 0, v15, vcc")
        a("v_cmp_le_u32 vcc, 2, v12")
        a("v_cndmask_b32 v4, v4, v14, vcc")
        a("v_cndmask_b32 v5, v5, v15, vcc")
        a("v_mov_b32 v16, 1152")
        a("v_cndmask_b32 v6, v6, v16, vcc")
        a(f"{L}_addr_done:")
        a("s_nop 1")
    if qkv and layer == 1:
        a(f"s_load_dwordx2 s[26:27], s[16:17], {WS_MISC + 16}") if False else None
    a("s_cmp_eq_u32 s5, 4")
    a(f"s_cbranch_scc1 {L}_w4")

    def dma(ks):
        a("s_mov_b32 m0, s6")
        a("s_add_u32 s6, s6, 5120")
        a("global_load_lds_dwordx4 v[4:5], off")
        if ks < 17:
            a("v_lshl_add_u64 v[4:5], v[6:7], 0, v[4:5]")

    def trread(ks, t, buf):
        base = 9 if ks < 9 else 10
        off = (ks % 9) * 5120 + t * 32
        d = WF + buf * 20 + t * 4
        a(f"ds_read_b64_tr_b16 v[{d}:{d+1}], v{base} offset:{off}")
        a(f"ds_read_b64_tr_b16 v[{d+2}:{d+3}], v{base} offset:{off+1280}")

    def compute(bop, waits, stats):
        for grp in range(3):
            a(f"s_waitcnt vmcnt({waits[grp]})")
            a("s_barrier")
            k0 = grp * 6
            for t in range(5):
                trread(k0, t, k0 & 1)
            for ks in range(k0, k0 + 6):
                last = ks == k0 + 5
                for t in range(5):
                    a(f"s_waitcnt lgkmcnt({8 if not last else 8 - 2*t})")
                    w = WF + (ks & 1) * 20 + t * 4
                    c = "0" if ks == 0 else vr(ACC + 4 * t, 4)
                    a(f"v_mfma_f32_16x16x32_bf16 {vr(ACC+4*t,4)}, {vr(w,4)}, {bop(ks)}, {c}")
                    if not last:
                        trread(ks + 1, t, (ks + 1) & 1)
                    if stats and t < 4:
                        x = XF + ks * 4 + t
                        a(f"v_dot2c_f32_bf16 v{11 + (t & 1)}, v{x}, v{ONES}")
                        a(f"v_dot2c_f32_bf16 v{13 + (t & 1)}, v{x}, v{x}")

    for ks in range(18):
        a(f"global_load_dwordx4 {vr(XF+4*ks,4)}, v8, s[8:9] offset:{ks*64}")
        dma(ks)
    nex = 0
    if not qkv:
        a("v_lshl_add_u32 v19, v2, 3, s7")
        a("v_add_u32 v21, v18, v19")
        if layer == 0:
            a("s_mov_b64 s[28:29], s[22:23]")
        else:
            a(f"s_add_u32 s28, s16, {WS_X1}")
            a("s_addc_u32 s29, s17, 0")
        a("v_min_u32 v22, 1, v2")
        a("v_lshl_add_u32 v23, v22, 3, s7")
        a("v_add_u32 v22, v18, v23")
        for t in range(4):
            a(f"global_load_dwordx2 {vr(RES+2*t,2)}, v21, s[28:29] offset:{t*32}")
            a(f"global_load_dwordx2 {vr(WRV+2*t,2)}, v19, s[18:19] offset:{t*32}")
        a(f"global_load_dwordx2 {vr(RES+8,2)}, v22, s[28:29] offset:128")
        a(f"global_load_dwordx2 {vr(WRV+8,2)}, v23, s[18:19] offset:128")
        nex = 10
    if layer == 1:
        a(f"s_add_u32 s30, s16, {WS_ST[0]}")
        a("s_addc_u32 s31, s17, 0")
        a("v_lshlrev_b32 v11, 4, v17")
        a(f"global_load_dwordx2 {vr(STV,2)}, v11, s[30:31]")
        nex += 1
        a(f"s_add_u32 s32, s16, {WS_MISC}")
        a("s_addc_u32 s33, s17, 0")
        a("s_load_dwordx2 s[26:27], s[32:33], 16")
        if not qkv:
            a(f"s_add_u32 s34, s16, {WS_X2F}")
            a("s_addc_u32 s35, s17, 0")
            for t in range(4):
                a(f"global_load_dwordx2 {vr(180+2*t,2)}, v19, s[34:35] offset:{t*32}")
            a(f"global_load_dwordx2 {vr(188,2)}, v23, s[34:35] offset:128")
            nex += 5
        a("s_waitcnt lgkmcnt(0)")
    stats = qkv and layer == 0
    if stats:
        a(f"v_mov_b32 v{ONES}, 0x3f803f80")
        for r in (11, 12, 13, 14):
            a(f"v_mov_b32 v{r}, 0")
    if qkv and layer == 1:
        patch(a, L, False)
    compute(lambda ks: vr(XF + 4 * ks, 4), [24 + nex, 12 + nex, 0], stats)

    if qkv:
        if layer == 0:
            a("v_add_f32 v11, v11, v12")
            a("v_add_f32 v13, v13, v14")
            allred_kq(a, 11, 15)
            allred_kq(a, 13, 15)
            ln_consts(a, 11, 13, 12, 14, 15, 16, 19)
            a("v_rcp_f32 v11, v16")
            a("v_mul_f32 v12, v15, v11")
        else:
            ln_consts(a, STV, STV + 1, 12, 14, 15, 16, 19)
            a("v_rcp_f32 v16, v16")
            a("v_add_f32 v11, 1.0, v16")
            a("v_mul_f32 v13, v15, v16")
            a("v_fma_f32 v12, v11, v12, -v13")
            a("v_mul_f32 v14, v14, v11")
            a("v_mul_f32 v14, v14, v11")
            a("v_cmp_eq_u32 vcc, s26, v17")
            a("v_mov_b32 v19, s36")
            a("v_cndmask_b32 v12, v12, v19, vcc")
            a("v_mov_b32 v19, s37")
            a("v_cndmask_b32 v14, v14, v19, vcc")
            a("v_cndmask_b32 v11, v11, 1.0, vcc")
            a("v_cndmask_b32 v13, v13, 0, vcc")
            ln_round(a, 12, 14, 15, 16, 19)
            a("v_rcp_f32 v16, v16")
            a("v_add_f32 v13, v13, v15")
            a("v_mul_f32 v11, v11, v16")
            a("v_mul_f32 v12, v13, v16")
        a("s_barrier")
        a(f"v_lshlrev_b32 v13, 4, v2")
        for t in range(5):
            a(f"ds_read_b128 {vr(WF+4*t,4)}, v13 offset:{G_LDS_CS + t*64}")
        a(f"v_mul_f32 v14, {f32(QSCALE)}, v11")
        a(f"v_mul_f32 v15, {f32(QSCALE)}, v12")
        a("s_cmp_eq_u32 s4, 7")
        a("s_cselect_b32 s38, 1.0, " + f32(QSCALE))
        a("v_mul_f32 v11, s38, v11")
        a("v_mul_f32 v12, s38, v12")
        a("s_waitcnt lgkmcnt(0)")
        for t in range(5):
            A, G = (14, 15) if t == 0 else (11, 12)
            for r in range(4):
                x = ACC + 4 * t + r
                a(f"v_mul_f32 v{x}, v{A}, v{x}")
                a(f"v_fma_f32 v{x}, -v{G}, v{WF+4*t+r}, v{x}")
        PK = WF + 20
        for t in range(5):
            a(f"v_cvt_pk_bf16_f32 v{PK+2*t}, v{ACC+4*t}, v{ACC+4*t+1}")
            a(f"v_cvt_pk_bf16_f32 v{PK+2*t+1}, v{ACC+4*t+2}, v{ACC+4*t+3}")
        a("v_lshl_add_u32 v19, v2, 3, s7")
        a("v_add_u32 v21, v18, v19")
        a(f"global_store_dwordx2 v21, {vr(PK,2)}, s[16:17]")
        a("s_cmp_eq_u32 s4, 7")
        a(f"s_cbranch_scc1 {L}_kv")
        for t in range(1, 5):
            a(f"global_store_dwordx2 v21, {vr(PK+2*t,2)}, s[16:17] offset:{t*32}")
        a("s_endpgm")
        a(f"{L}_kv:")
        a(f"s_add_u32 s40, s16, {WS_KV}")
        a("s_addc_u32 s41, s17, 0")
        a("v_lshrrev_b32 v11, 8, v17")
        a(f"v_mul_u32_u24 v11, {KVCH}, v11")
        a("v_bfe_u32 v12, v17, 5, 3")
        a("v_and_b32 v13, 31, v17")
        a("v_lshl_add_u32 v14, v12, 10, v11")
        a("v_lshl_add_u32 v14, v13, 4, v14")
        a("v_lshrrev_b32 v15, 1, v2")
        a("v_lshl_add_u32 v14, v15, 9, v14")
        a("v_and_b32 v15, 1, v2")
        a("v_lshl_add_u32 v14, v15, 3, v14")
        a(f"global_store_dwordx2 v14, {vr(PK+2,2)}, s[40:41]")
        a("v_mul_u32_u24 v14, 1216, v12")
        a("v_add_u32 v14, v14, v11")
        a("v_lshrrev_b32 v15, 4, v13")
        a("v_mul_u32_u24 v15, 608, v15")
        a("v_add_u32 v14, v14, v15")
        a("v_bfe_u32 v15, v13, 2, 1")
        a("v_mul_u32_u24 v15, 304, v15")
        a("v_add_u32 v14, v14, v15")
        a("v_and_b32 v15, 3, v13")
        a("v_lshl_add_u32 v14, v15, 1, v14")
        a("v_bfe_u32 v15, v13, 3, 1")
        a("v_lshl_add_u32 v14, v15, 3, v14")
        a("v_add_u32 v14, 9216, v14")
        a("v_lshl_add_u32 v15, v2, 6, v14")
        a(f"global_store_short v15, v{PK+6}, s[40:41]")
        a(f"global_store_short_d16_hi v15, v{PK+6}, s[40:41] offset:16")
        a(f"global_store_short v15, v{PK+7}, s[40:41] offset:32")
        a(f"global_store_short_d16_hi v15, v{PK+7}, s[40:41] offset:48")
        K1 = ACC + 4
        a(f"v_mul_f32 v16, v{K1}, v{K1}")
        for r in range(1, 4):
            a(f"v_fmac_f32 v16, v{K1+r}, v{K1+r}")
        a("v_lshl_add_u32 v11, v13, 4, v11")
        a("v_bfe_u32 v15, v12, 1, 1")
        a("v_lshl_add_u32 v11, v15, 9, v11")
        a("v_lshrrev_b32 v15, 2, v12")
        a("v_lshl_add_u32 v11, v15, 3, v11")
        a("v_and_b32 v15, 1, v12")
        a("v_lshl_add_u32 v11, v15, 2, v11")
        a("v_add_u32 v11, 8192, v11")
        a("v_mov_b32 v15, 0x3f80")
        a("s_mov_b32 exec_lo, 0xffff0000")
        a("s_mov_b32 exec_hi, 0")
        a(f"v_fmac_f32 v16, v{ACC+10}, v{ACC+10}")
        a(f"v_fmac_f32 v16, v{ACC+11}, v{ACC+11}")
        a(f"global_store_dword v11, v{PK+5}, s[40:41]")
        a(f"global_store_short v14, v{PK+9}, s[40:41] offset:256")
        a(f"global_store_short_d16_hi v14, v{PK+9}, s[40:41] offset:272")
        a(f"global_store_short v14, v15, s[40:41] offset:288")
        a("s_mov_b64 exec, -1")
        allred_kq(a, 16, 15)
        allred_row(a, 16, "v_max_f32")
        a("s_lshl_b32 s24, s3, 4")
        a("s_lshl_b32 s25, s5, 2")
        a("s_add_u32 s24, s24, s25")
        a(f"s_add_u32 s24, s24, {WS_KN}")
        a("v_mov_b32 v15, s24")
        a("s_mov_b64 exec, 1")
        a("global_store_dword v15, v16, s[16:17]")
        a("s_endpgm")
    else:
        if layer == 1:
            ln_consts(a, STV, STV + 1, 12, 14, 15, 16, 11)
            a("v_rcp_f32 v16, v16")
            a("v_cmp_eq_u32 s[36:37], s26, v17")
        for r in (11, 12, 13):
            a(f"v_mov_b32 v{r}, 0")
        T = WF
        for t in range(5):
            if t == 4:
                a("s_mov_b32 exec_hi, 0")
            for p in range(2):
                src = RES + 2 * t + p
                lo, hi = T, T + 1
                a(f"v_lshlrev_b32 v{lo}, 16, v{src}")
                a(f"v_and_b32 v{hi}, 0xffff0000, v{src}")
                if layer == 1:
                    a(f"v_sub_f32 v{T+2}, v{lo}, v15")
                    a(f"v_sub_f32 v{T+3}, v{hi}, v15")
                    a(f"v_cvt_pk_bf16_f32 v{T+4}, v{T+2}, v{T+3}")
                    a(f"v_lshlrev_b32 v{T+2}, 16, v{T+4}")
                    a(f"v_and_b32 v{T+3}, 0xffff0000, v{T+4}")
                    a(f"v_mul_f32 v{T+2}, v{T+2}, v16")
                    a(f"v_mul_f32 v{T+3}, v{T+3}, v16")
                    a(f"v_cvt_pk_bf16_f32 v{T+4}, v{T+2}, v{T+3}")
                    a(f"v_lshlrev_b32 v{T+2}, 16, v{T+4}")
                    a(f"v_and_b32 v{T+3}, 0xffff0000, v{T+4}")
                    a(f"v_add_f32 v{T+2}, v{T+2}, v{lo}")
                    a(f"v_add_f32 v{T+3}, v{T+3}, v{hi}")
                    a(f"v_cvt_pk_bf16_f32 v{T+4}, v{T+2}, v{T+3}")
                    a(f"v_cndmask_b32 v{T+4}, v{T+4}, v{180+2*t+p}, s[36:37]")
                    a(f"v_lshlrev_b32 v{lo}, 16, v{T+4}")
                    a(f"v_and_b32 v{hi}, 0xffff0000, v{T+4}")
                x = ACC + 4 * t + 2 * p
                a(f"v_cvt_pk_bf16_f32 v{T+4}, v{x}, v{x+1}")
                a(f"v_lshlrev_b32 v{T+2}, 16, v{T+4}")
                a(f"v_and_b32 v{T+3}, 0xffff0000, v{T+4}")
                a(f"v_add_f32 v{T+2}, v{T+2}, v{lo}")
                a(f"v_add_f32 v{T+3}, v{T+3}, v{hi}")
                a(f"v_cvt_pk_bf16_f32 v{src}, v{T+2}, v{T+3}")
                a(f"v_lshlrev_b32 v{T+2}, 16, v{src}")
                a(f"v_and_b32 v{T+3}, 0xffff0000, v{src}")
                a(f"v_add_f32 v11, v11, v{T+2}")
                a(f"v_add_f32 v11, v11, v{T+3}")
                a(f"v_fmac_f32 v12, v{T+2}, v{T+2}")
                a(f"v_fmac_f32 v12, v{T+3}, v{T+3}")
                a(f"v_dot2c_f32_bf16 v13, v{src}, v{WRV+2*t+p}")
        a(f"s_add_u32 s28, s16, {WS_X1 if layer == 0 else WS_X3}")
        a("s_addc_u32 s29, s17, 0")
        a(f"global_store_dwordx2 v21, {vr(RES+8,2)}, s[28:29] offset:128")
        a("s_mov_b64 exec, -1")
        for t in range(4):
            a(f"global_store_dwordx2 v21, {vr(RES+2*t,2)}, s[28:29] offset:{t*32}")
        allred_kq(a, 11, 14)
        allred_kq(a, 12, 14)
        allred_kq(a, 13, 14)
        a("v_cmp_eq_u32 vcc, 1, v2")
        a("v_cndmask_b32 v11, v11, v12, vcc")
        a("v_cmp_eq_u32 vcc, 2, v2")
        a("v_cndmask_b32 v11, v11, v13, vcc")
        a("v_lshlrev_b32 v14, 4, v17")
        a("v_lshl_add_u32 v14, v2, 2, v14")
        a(f"s_add_u32 s30, s16, {WS_ST[layer]}")
        a("s_addc_u32 s31, s17, 0")
        a("s_mov_b32 exec_hi, 0x0000ffff")
        a("global_atomic_add_f32 v14, v11, s[30:31]")
        a("s_endpgm")

    a(f"{L}_w4:")
    a.reset()
    for ks in range(18):
        dma(ks)
    nex4 = 0
    if qkv and layer == 0:
        a("s_lshl_b32 s24, s2, 9")
        a(f"s_add_u32 s24, s24, {WS_ZERO}")
        a("v_lshlrev_b32 v11, 3, v1")
        a("v_add_u32 v11, s24, v11")
        a("v_mov_b32 v12, 0")
        a("v_mov_b32 v13, 0")
        a("global_store_dwordx2 v11, v[12:13], s[16:17] sc0 sc1")
        nex4 = 1
    if qkv and layer == 1:
        a(f"s_add_u32 s32, s16, {WS_MISC}")
        a("s_addc_u32 s33, s17, 0")
        a("s_load_dwordx2 s[26:27], s[32:33], 16")
        a(f"s_add_u32 s30, s16, {WS_ST[0]}")
        a("s_addc_u32 s31, s17, 0")
        a("s_waitcnt lgkmcnt(0)")
        patch(a, L, True)
    if qkv:
        for r in range(4):
            a(f"v_mov_b32 v{ONES+r}, 0x3f803f80")
        compute(lambda ks: vr(ONES, 4), [12 + nex4, 6 + nex4, 0], False)
        a("v_lshlrev_b32 v13, 4, v2")
        a("s_mov_b32 exec_lo, 0x00010001")
        a("s_mov_b32 exec_hi, 0x00010001")
        for t in range(5):
            a(f"ds_write_b128 v13, {vr(ACC+4*t,4)} offset:{G_LDS_CS + t*64}")
        a("s_waitcnt lgkmcnt(0)")
        a("s_barrier")
        if layer == 0:
            a("s_mov_b64 exec, -1")
            a("s_cmp_lg_u32 s2, 0")
            a(f"s_cbranch_scc1 {L}_end")
            a("v_lshlrev_b32 v11, 2, v1")
            for i in range(4):
                a(f"global_load_dword v{24+i}, v11, s[18:19] offset:{i*256}")
            a("v_mov_b32 v28, 0")
            a("s_mov_b32 exec_hi, 0")
            a("global_load_dword v28, v11, s[18:19] offset:1024")
            a("s_mov_b64 exec, -1")
            a("v_mov_b32 v12, 0")
            a("s_waitcnt vmcnt(0)")
            for i in range(5):
                a(f"v_dot2c_f32_bf16 v12, v{24+i}, v{ONES}")
            a("v_add_f32 v12, 0, v12")
            allred_kq(a, 12, 14)
            allred_row(a, 12)
            a(f"v_mov_b32 v11, {WS_MISC}")
            a("s_mov_b64 exec, 1")
            a("global_store_dword v11, v12, s[16:17]")
    else:
        for w in (12, 6, 0):
            a(f"s_waitcnt vmcnt({w})")
            a("s_barrier")
    a(f"{L}_end:")
    a("s_endpgm")
    kernels.append((name, 192, 48))


def patch(a, L, w4):
    XF = 24
    sfx = "b" if w4 else "a"
    T = 96
    a("s_mov_b32 s36, 0")
    a("s_mov_b32 s37, 0")
    a("s_lshr_b32 s38, s26, 6")
    a("s_cmp_lg_u32 s38, s3")
    a(f"s_cbranch_scc1 {L}_nopatch_{sfx}")
    a("s_lshl_b32 s38, s26, 4")
    a("s_add_u32 s38, s30, s38")
    a("s_addc_u32 s39, s31, 0")
    a("s_load_dwordx2 s[42:43], s[38:39], 0")
    a("v_min_u32 v11, 287, v0")
    a("v_lshlrev_b32 v12, 3, v11")
    a(f"v_add_u32 v12, {WS_Y[0]}, v12")
    for r in range(NREP):
        if r:
            a("v_add_u32 v12, 2304, v12")
        a(f"global_load_dwordx2 {vr(T+2*r,2)}, v12, s[16:17]")
    a("s_mul_i32 s38, s26, 1152")
    a(f"s_add_u32 s38, s38, {WS_X1}")
    a("v_lshlrev_b32 v13, 2, v11")
    a("v_add_u32 v14, s38, v13")
    a(f"global_load_dword v{T+16}, v14, s[16:17]")
    a("s_waitcnt lgkmcnt(0)")
    a(f"v_mov_b32 v{T+20}, s42")
    a(f"v_mov_b32 v{T+21}, s43")
    ln_consts(a, T + 20, T + 21, T + 22, T + 23, T + 24, T + 25, T + 26)
    a(f"v_rcp_f32 v{T+25}, v{T+25}")
    a("s_waitcnt vmcnt(0)")
    fix_row(a, T, T + 16, T + 24, T + 25, "s27", T + 27)
    a(f"ds_write_b32 v13, v{T+16} offset:{G_LDS_PX}")
    a("s_cmp_lg_u32 s4, 0")
    a(f"s_cbranch_scc1 {L}_nostore_{sfx}")
    a(f"v_add_u32 v14, {WS_X2F}, v13")
    a(f"global_store_dword v14, v{T+16}, s[16:17]")
    a("s_waitcnt vmcnt(0)")
    a(f"{L}_nostore_{sfx}:")
    a(f"v_lshlrev_b32 v{T}, 16, v{T+16}")
    a(f"v_and_b32 v{T+1}, 0xffff0000, v{T+16}")
    a(f"v_add_f32 v{T+2}, v{T}, v{T+1}")
    a(f"v_mul_f32 v{T+3}, v{T}, v{T}")
    a(f"v_fmac_f32 v{T+3}, v{T+1}, v{T+1}")
    a("v_cmp_gt_u32 vcc, 288, v0")
    a(f"v_cndmask_b32 v{T+2}, 0, v{T+2}, vcc")
    a(f"v_cndmask_b32 v{T+3}, 0, v{T+3}, vcc")
    for r in (T + 2, T + 3):
        allred_kq(a, r, T + 4)
        allred_row(a, r)
    a("s_lshl_b32 s38, s5, 3")
    a(f"v_mov_b32 v{T+4}, s38")
    a(f"ds_write_b64 v{T+4}, {vr(T+2,2)} offset:{G_LDS_RED}")
    a("s_waitcnt lgkmcnt(0)")
    a("s_barrier")
    if not w4:
        a(f"v_mov_b32 v{T+4}, 0")
        a(f"ds_read_b128 {vr(T+8,4)}, v{T+4} offset:{G_LDS_RED}")
        a(f"ds_read_b128 {vr(T+12,4)}, v{T+4} offset:{G_LDS_RED+16}")
        a(f"ds_read_b64 {vr(T+16,2)}, v{T+4} offset:{G_LDS_RED+32}")
        a("v_cmp_eq_u32 vcc, s26, v17")
        a("v_lshlrev_b32 v11, 4, v2")
        a("s_and_saveexec_b64 s[38:39], vcc")
        a(f"s_cbranch_execz {L}_noreload")
        for ks in range(18):
            a(f"ds_read_b128 {vr(XF+4*ks,4)}, v11 offset:{G_LDS_PX + ks*64}")
            if ks % 6 == 5:
                a("s_waitcnt lgkmcnt(0)")
        a(f"{L}_noreload:")
        a("s_mov_b64 exec, s[38:39]")
        a("s_waitcnt lgkmcnt(0)")
        for o in (0, 1):
            a(f"v_add_f32 v{T+8+o}, v{T+8+o}, v{T+10+o}")
            a(f"v_add_f32 v{T+12+o}, v{T+12+o}, v{T+14+o}")
            a(f"v_add_f32 v{T+8+o}, v{T+8+o}, v{T+12+o}")
            a(f"v_add_f32 v{T+8+o}, v{T+8+o}, v{T+16+o}")
        a(f"v_mul_f32 v{T+8}, {f32(1/576)}, v{T+8}")
        a(f"v_mul_f32 v{T+9}, {f32(1/576)}, v{T+9}")
        a(f"v_fma_f32 v{T+9}, -v{T+8}, v{T+8}, v{T+9}")
        a(f"v_max_f32 v{T+9}, 0, v{T+9}")
        a(f"v_readfirstlane_b32 s36, v{T+8}")
        a(f"v_readfirstlane_b32 s37, v{T+9}")
    a(f"{L}_nopatch_{sfx}:")
    a("s_nop 2")


def fix_row(a, Y, X, mb, inv, rsel, t):
    n = NREP
    step = 1
    while step < n:
        for r in range(0, n, 2 * step):
            for o in (0, 1):
                a(f"v_add_f32 v{Y+2*r+o}, v{Y+2*r+o}, v{Y+2*(r+step)+o}")
        step *= 2
    def rnd(lo, hi):
        a(f"v_cvt_pk_bf16_f32 v{t+4}, v{lo}, v{hi}")
        a(f"v_lshlrev_b32 v{lo}, 16, v{t+4}")
        a(f"v_and_b32 v{hi}, 0xffff0000, v{t+4}")
    rnd(Y, Y + 1)
    a(f"v_mul_f32 v{Y}, {rsel}, v{Y}")
    a(f"v_mul_f32 v{Y+1}, {rsel}, v{Y+1}")
    rnd(Y, Y + 1)
    a(f"v_lshlrev_b32 v{t}, 16, v{X}")
    a(f"v_and_b32 v{t+1}, 0xffff0000, v{X}")
    a(f"v_sub_f32 v{t+2}, v{t}, v{mb}")
    a(f"v_sub_f32 v{t+3}, v{t+1}, v{mb}")
    rnd(t + 2, t + 3)
    a(f"v_mul_f32 v{t+2}, v{t+2}, v{inv}")
    a(f"v_mul_f32 v{t+3}, v{t+3}, v{inv}")
    rnd(t + 2, t + 3)
    a(f"v_add_f32 v{t+2}, v{t+2}, v{Y}")
    a(f"v_add_f32 v{t+3}, v{t+3}, v{Y+1}")
    rnd(t + 2, t + 3)
    a(f"v_add_f32 v{t+2}, v{t+2}, v{t}")
    a(f"v_add_f32 v{t+3}, v{t+3}, v{t+1}")
    a(f"v_cvt_pk_bf16_f32 v{X}, v{t+2}, v{t+3}")


def attn_kernel(a, name):
    L = name
    begin(a, name)
    Q1, Q2, NM, O, S0, P, K1, K2, V = 8, 12, 20, 36, 52, 84, 92, 100, 108
    a("s_cmp_ge_u32 s2, 256")
    a(f"s_cbranch_scc1 {L}_end")
    a(f"s_load_dwordx2 s[16:17], s[0:1], {KA_WS}")
    a("v_and_b32 v1, 63, v0")
    a("v_lshrrev_b32 v2, 6, v0")
    a("v_readfirstlane_b32 s5, v2")
    a("v_and_b32 v3, 31, v0")
    a("v_bfe_u32 v4, v0, 5, 1")
    a("s_and_b32 s3, s2, 7")
    a("s_lshr_b32 s4, s2, 3")
    a("s_lshl_b32 s6, s3, 8")
    a("s_lshl_b32 s7, s5, 5")
    a("s_add_u32 s6, s6, s7")
    a("v_add_u32 v5, s6, v3")
    a("v_mul_u32_u24 v5, 1152, v5")
    a("s_mul_i32 s7, s4, 36")
    a("v_add_u32 v5, s7, v5")
    a("v_lshl_add_u32 v6, v4, 4, v5")
    a("v_lshlrev_b32 v7, 4, v0")
    a("v_lshlrev_b32 v2, 3, v1")
    a("s_waitcnt lgkmcnt(0)")
    a(f"global_load_dwordx4 {vr(Q1,4)}, v6, s[16:17]")
    a(f"global_load_dword v{Q2}, v5, s[16:17] offset:32")
    a(f"s_add_u32 s18, s16, {WS_KN}")
    a("s_addc_u32 s19, s17, 0")
    a(f"global_load_dwordx2 {vr(P,2)}, v2, s[18:19]")
    a(f"s_add_u32 s18, s16, {WS_KV}")
    a("s_addc_u32 s19, s17, 0")
    a("s_lshl_b32 s8, s5, 10")
    for j in range(19):
        if j == 18:
            a("s_cmp_lt_u32 s5, 4")
            a("s_cselect_b32 s9, 0, 8192")
            a("s_sub_u32 s8, s8, s9")
            a("s_sub_u32 s18, s18, s9")
            a("s_subb_u32 s19, s19, 0")
        a("s_mov_b32 m0, s8")
        a("s_add_u32 s8, s8, 8192")
        a("global_load_lds_dwordx4 v7, s[18:19]")
        a("s_add_u32 s18, s18, 8192")
        a("s_addc_u32 s19, s19, 0")
    a("v_lshlrev_b32 v6, 4, v1")
    a("v_add_u32 v7, -16, v3")
    a("v_cmp_lt_u32 vcc, 18, v3")
    a("v_cndmask_b32 v7, v3, v7, vcc")
    a("v_lshlrev_b32 v7, 4, v7")
    a("v_mul_u32_u24 v2, 304, v4")
    a("v_add_u32 v7, v7, v2")
    a("s_waitcnt vmcnt(19)")
    a(f"v_max_f32 v{P}, v{P}, v{P+1}")
    allred_row(a, P, "v_max_f32")
    allred_kq(a, P, P + 1, "v_max_f32")
    a("v_cmp_eq_u32 vcc, 0, v4")
    a(f"v_cndmask_b32 v{Q2+1}, 0, v{Q2}, vcc")
    a(f"v_cndmask_b32 v{Q2+4}, v{Q2}, 0, vcc")
    a(f"v_mov_b32 v{P+2}, 0")
    a(f"v_dot2c_f32_bf16 v{P+2}, v{Q2+1}, v{Q2+1}")
    for r in range(4):
        a(f"v_dot2c_f32_bf16 v{P+2}, v{Q1+r}, v{Q1+r}")
    a(f"v_mov_b32 v{Q2}, v{Q2+1}")
    a(f"v_mov_b32 v{Q2+3}, v{Q2+1}")
    a(f"v_mov_b32 v{Q2+1}, 0")
    a(f"v_mov_b32 v{Q2+2}, 0")
    a(f"v_mov_b32 v{Q2+7}, v{Q2+4}")
    a(f"v_mov_b32 v{Q2+5}, 0")
    a(f"v_mov_b32 v{Q2+6}, 0")
    a(f"v_mov_b32 v{P+3}, v{P+2}")
    a(f"v_permlane32_swap_b32 v{P+2}, v{P+3}")
    a(f"v_add_f32 v{P+2}, v{P+2}, v{P+3}")
    a(f"v_mul_f32 v{P+2}, v{P+2}, v{P}")
    a(f"v_sqrt_f32 v{P+2}, v{P+2}")
    for r in range(16):
        a(f"v_sub_f32 v{NM+r}, 0, v{P+2}")
    a("s_mov_b32 s10, 0")
    a("s_waitcnt vmcnt(16)")
    a("s_barrier")

    def rdK1(t, buf):
        off = t * 1024 if t < 8 else KVCH + (t - 8) * 1024
        a(f"ds_read_b128 {vr(K1+4*buf,4)}, v124 offset:{off}")

    def rdK2(c, buf):
        a(f"ds_read_b128 {vr(K2+4*buf,4)}, v124 offset:{8192 + c*KVCH}")

    def rdV(t, buf):
        off = 9216 + t * 1216 if t < 8 else KVCH + 9216 + (t - 8) * 1216
        a(f"ds_read_b128 {vr(V+8*buf,4)}, v125 offset:{off}")
        a(f"ds_read_b128 {vr(V+8*buf+4,4)}, v125 offset:{off+608}")

    def qk1(t, cinit):
        a(f"v_mfma_f32_32x32x16_bf16 {vr(S0+16*(t&1),16)}, {vr(K1+4*(t&1),4)}, {vr(Q1,4)}, {cinit}")

    def qk2(t, k2buf):
        t8 = t & 7
        a(f"v_mfma_f32_32x32x8_bf16 {vr(S0+16*(t&1),16)}, {vr(K2+4*k2buf+2*(t8>>2),2)}, {vr(Q2+2*(t8&3),2)}, {vr(S0+16*(t&1),16)}")

    a(f"{L}_pass:")
    a("v_mov_b32 v124, v6")
    a("v_mov_b32 v125, v7")
    for r in range(16):
        a(f"v_mov_b32 v{O+r}, 0")
    rdK1(0, 0)
    rdK2(0, 0)
    rdK1(1, 1)
    rdV(0, 0)
    a("s_waitcnt lgkmcnt(3)")
    qk1(0, vr(NM, 16))
    qk2(0, 0)
    a("s_mov_b32 s11, 0")
    a("s_nop 7")
    a("s_nop 3")
    a(".p2align 6")
    a(f"{L}_loop:")
    for cc in range(2):
        for t in range(8):
            S = S0 + 16 * (t & 1)
            vb = V + 8 * (t & 1)
            e = lambda i: a(f"v_exp_f32 v{S+i}, v{S+i}")
            c = lambda i: a(f"v_cvt_pk_bf16_f32 v{P+i}, v{S+2*i}, v{S+2*i+1}")
            if cc == 0 and t == 6:
                a("s_or_b32 s12, s10, s11")
                a(f"s_cbranch_scc1 {L}_nobar")
                a("s_waitcnt vmcnt(0)")
                a("s_barrier")
                a(f"{L}_nobar:")
            a("s_waitcnt lgkmcnt(2)")
            qk1(t + 1, vr(NM, 16))
            e(0)
            if t == 6:
                rdK2(1, cc ^ 1)
            rdK1(t + 2, t & 1)
            e(1); e(2); e(3)
            qk2(t + 1, cc if t < 7 else cc ^ 1)
            e(4); c(0); e(5); c(1); e(6); e(7); c(2); e(8); c(3)
            a(f"s_waitcnt lgkmcnt({2 if t == 6 else 1})")
            e(9)
            a(f"v_mfma_f32_32x32x16_bf16 {vr(O,16)}, {vr(vb,4)}, {vr(P,4)}, {vr(O,16)}")
            e(10)
            rdV(t + 1, (t + 1) & 1)
            c(4); e(11); e(12); c(5); e(13); e(14); c(6); e(15)
            a("s_nop 0")
            c(7)
            if t == 7:
                a(f"v_add_u32 v124, {KVCH}, v124")
                a(f"v_add_u32 v125, {KVCH}, v125")
            else:
                a("s_nop 1")
            a(f"v_mfma_f32_32x32x16_bf16 {vr(O,16)}, {vr(vb+4,4)}, {vr(P+4,4)}, {vr(O,16)}")
    a("s_add_u32 s11, s11, 1")
    a("s_cmp_lt_u32 s11, 4")
    a(f"s_cbranch_scc1 {L}_loop")
    a("s_waitcnt lgkmcnt(0)")
    a("s_nop 7")
    a("s_nop 3")
    a(f"v_mov_b32 v{P}, v{O+10}")
    a(f"v_mov_b32 v{P+1}, v{O+10}")
    a(f"v_permlane32_swap_b32 v{P}, v{P+1}")
    a("s_cmp_lg_u32 s10, 0")
    a(f"s_cbranch_scc1 {L}_fin")
    a(f"v_cmp_le_f32 vcc, {f32(2.0**-80)}, v{P}")
    a(f"v_cmp_ge_f32 s[12:13], {'s14'}, v{P}") if False else None
    a(f"s_mov_b32 s14, {f32(2.0**20)}")
    a(f"v_cmp_ge_f32 s[12:13], s14, v{P}")
    a("s_and_b64 vcc, vcc, s[12:13]")
    a("s_cmp_eq_u64 vcc, -1")
    a(f"s_cbranch_scc1 {L}_fin")
    a("v_mov_b32 v124, v6")
    a(f"v_mov_b32 v{P}, 0xff800000")
    a("s_mov_b32 s11, 0")
    a(f"{L}_mx:")
    rdK2(0, 0)
    for t in range(8):
        rdK1(t, t & 1)
        a("s_waitcnt lgkmcnt(0)")
        qk1(t, "0")
        qk2(t, 0)
        S = S0 + 16 * (t & 1)
        for i in range(8):
            a(f"v_max3_f32 v{P}, v{S+2*i}, v{S+2*i+1}, v{P}")
    a(f"v_add_u32 v124, {KVCH}, v124")
    a("s_add_u32 s11, s11, 1")
    a("s_cmp_lt_u32 s11, 8")
    a(f"s_cbranch_scc1 {L}_mx")
    a(f"v_mov_b32 v{P+1}, v{P}")
    a(f"v_permlane32_swap_b32 v{P}, v{P+1}")
    a(f"v_max_f32 v{P}, v{P}, v{P+1}")
    for r in range(16):
        a(f"v_sub_f32 v{NM+r}, 0, v{P}")
    a("s_mov_b32 s10, 1")
    a(f"s_branch {L}_pass")
    a(f"{L}_fin:")
    a(f"v_rcp_f32 v{P}, v{P}")
    for r in range(10):
        a(f"v_mul_f32 v{O+r}, v{O+r}, v{P}")
    for r in range(5):
        a(f"v_cvt_pk_bf16_f32 v{S0+r}, v{O+2*r}, v{O+2*r+1}")
    a(f"s_add_u32 s18, s16, {WS_O}")
    a("s_addc_u32 s19, s17, 0")
    a("v_lshl_add_u32 v6, v4, 3, v5")
    a(f"global_store_dwordx2 v6, {vr(S0,2)}, s[18:19]")
    a(f"global_store_dwordx2 v6, {vr(S0+2,2)}, s[18:19] offset:16")
    a("s_mov_b32 exec_hi, 0")
    a(f"global_store_dword v5, v{S0+4}, s[18:19] offset:32")
    a(f"{L}_end:")
    a("s_endpgm")
    kernels.append((name, 128, 32))


F_LDS_MAX = 0
F_LDS_GU = 64
F_LDS_H = 4160
F_LDS_Y = 4416
F_LDS = 11328


def ffn_kernel(a, name, layer):
    L = name
    begin(a, name)
    last = layer == 1
    NWG = 256 if last else 144
    WGU, WD, ST, XS, AC = 16, 88, 132, 164, 184
    a(f"s_cmp_ge_u32 s2, {NWG}")
    a(f"s_cbranch_scc1 {L}_end")
    a(f"s_load_dwordx2 s[16:17], s[0:1], {KA_WS}")
    a(f"s_load_dwordx4 s[8:11], s[0:1], {KA_WG}")
    a(f"s_load_dwordx4 s[12:15], s[0:1], {KA_WD}")
    a(f"s_load_dwordx2 s[44:45], s[0:1], {KA_DBG}")
    a("v_and_b32 v1, 63, v0")
    a("v_lshrrev_b32 v2, 6, v0")
    a("v_readfirstlane_b32 s5, v2")
    a("s_and_b32 s3, s2, 7")
    a("s_mul_i32 s3, s3, 18")
    a("s_lshr_b32 s4, s2, 3")
    a("s_add_u32 s3, s3, s4")
    a("v_lshlrev_b32 v3, 4, v0")
    a("v_lshrrev_b32 v4, 2, v0")
    a("v_and_b32 v5, 3, v0")
    a("v_mul_u32_u24 v6, 9216, v4")
    a("v_lshl_add_u32 v6, v5, 4, v6")
    a("v_mul_u32_u24 v7, 911, v0")
    a("v_lshrrev_b32 v7, 16, v7")
    a("v_mul_u32_u24 v8, 72, v7")
    a("v_sub_u32 v8, v0, v8")
    a("v_min_u32 v9, 2, v7")
    a("v_mul_u32_u24 v10, 1152, v9")
    a("v_lshl_add_u32 v10, v8, 4, v10")
    a("s_waitcnt lgkmcnt(0)")
    a(f"s_add_u32 s18, s16, {WS_ST[layer]}")
    a("s_addc_u32 s19, s17, 0")
    a(f"s_add_u32 s20, s16, {WS_MISC}")
    a("s_addc_u32 s21, s17, 0")
    a("s_load_dword s22, s[20:21], 0")
    a("s_mov_b64 s[24:25], s[18:19]")
    for i in range(8):
        a(f"global_load_dwordx4 {vr(ST+4*i,4)}, v3, s[24:25]")
        if i < 7:
            a("s_add_u32 s24, s24, 4096")
            a("s_addc_u32 s25, s25, 0")
    a(f"s_add_u32 s26, s16, {WS_X1 if layer == 0 else WS_X3}")
    a("s_addc_u32 s27, s17, 0")
    nw = 0
    if last:
        EW, EST = 200, 212
        a("s_mul_i32 s28, s2, 9216")
        a("v_add_u32 v11, s28, v3")
        a(f"global_load_dwordx4 {vr(EW,4)}, v11, s[26:27]")
        a("v_add_u32 v12, 4096, v11")
        a(f"global_load_dwordx4 {vr(EW+4,4)}, v12, s[26:27]")
        a("v_and_b32 v13, 0x3f0, v3")
        a("v_add_u32 v13, s28, v13")
        a("v_add_u32 v13, 8192, v13")
        a(f"global_load_dwordx4 {vr(EW+8,4)}, v13, s[26:27]")
        a("s_lshl_b32 s29, s2, 3")
        a("v_add_u32 v218, s29, v7")
        a("v_add_u32 v219, 256, v0")
        a("v_mul_u32_u24 v219, 911, v219")
        a("v_lshrrev_b32 v219, 16, v219")
        a("v_add_u32 v219, s29, v219")
        a("s_add_u32 s29, s29, 7")
        a("v_mov_b32 v220, s29")
        for i in range(3):
            a(f"v_lshlrev_b32 v14, 4, v{218+i}")
            a(f"global_load_dwordx2 {vr(EST+2*i,2)}, v14, s[18:19]")
        nw += 6
        a("s_cmp_ge_u32 s2, 144")
        a(f"s_cbranch_scc1 {L}_now")
    a("s_lshl_b32 s6, s3, 6")
    a("s_add_u32 s8, s8, s6")
    a("s_addc_u32 s9, s9, 0")
    a("s_add_u32 s10, s10, s6")
    a("s_addc_u32 s11, s11, 0")
    a("s_mul_i32 s6, s3, 36864")
    a("s_add_u32 s12, s12, s6")
    a("s_addc_u32 s13, s13, 0")
    for i in range(9):
        a(f"global_load_dwordx4 {vr(WGU+8*i,4)}, v6, s[8:9]")
        a(f"global_load_dwordx4 {vr(WGU+8*i+4,4)}, v6, s[10:11]")
        if i < 8:
            a(f"v_add_u32 v6, {64*9216}, v6")
    for i in range(11):
        if i == 10:
            a("v_cmp_eq_u32 vcc, 2, v9")
            a("v_subrev_u32 v14, 1152, v10")
            a("v_cndmask_b32 v10, v10, v14, vcc")
        a(f"global_load_dwordx4 {vr(WD+4*i,4)}, v10, s[12:13]")
        if i < 10:
            a("v_add_u32 v10, 3456, v10")
    a(f"s_waitcnt vmcnt({29+nw})")
    if last:
        a(f"s_branch {L}_w")
        a(f"{L}_now:")
        a(f"s_waitcnt vmcnt({nw})")
        a(f"{L}_w:")
    a("s_waitcnt lgkmcnt(0)")
    T = XS
    a("v_mov_b32 v15, 0")
    for i in range(8):
        s = ST + 4 * i
        ln_consts(a, s, s + 1, T, T + 1, T + 2, T + 3, T + 4)
        a(f"v_rcp_f32 v{T+3}, v{T+3}")
        a(f"v_fma_f32 v{T}, -v{T+2}, s22, v{s+2}")
        a(f"v_mul_f32 v{T}, v{T}, v{T+3}")
        a(f"v_cvt_pk_bf16_f32 v{T}, v{T}, v{T}")
        a(f"v_ashrrev_i32 v{T+1}, 31, v{T}")
        a(f"v_or_b32 v{T+1}, 0x80000000, v{T+1}")
        a(f"v_xor_b32 v{T}, v{T}, v{T+1}")
        a(f"v_sub_u32 v{T+1}, {0xffff - 256*i}, v0")
        a(f"v_and_b32 v{T}, 0xffff0000, v{T}")
        a(f"v_or_b32 v{T}, v{T}, v{T+1}")
        a(f"v_max_u32 v15, v15, v{T}")
    allred_row(a, 15, "v_max_u32")
    allred_kq(a, 15, 14, "v_max_u32")
    a("s_lshl_b32 s6, s5, 2")
    a("v_mov_b32 v14, s6")
    a(f"ds_write_b32 v14, v15 offset:{F_LDS_MAX}")
    a("s_waitcnt lgkmcnt(0)")
    a("s_barrier")
    a("v_mov_b32 v14, 0")
    a(f"ds_read_b128 {vr(T,4)}, v14 offset:{F_LDS_MAX}")
    a("s_waitcnt lgkmcnt(0)")
    a(f"v_max_u32 v{T}, v{T}, v{T+1}")
    a(f"v_max3_u32 v{T}, v{T}, v{T+2}, v{T+3}")
    a(f"v_readfirstlane_b32 s30, v{T}")
    a("s_and_b32 s31, s30, 0xffff")
    a("s_sub_u32 s31, 0xffff, s31")
    a("s_lshl_b32 s6, s31, 4")
    a("s_add_u32 s32, s18, s6")
    a("s_addc_u32 s33, s19, 0")
    a("s_load_dwordx2 s[34:35], s[32:33], 0")
    a("s_mul_i32 s6, s31, 1152")
    a("s_add_u32 s36, s26, s6")
    a("s_addc_u32 s37, s27, 0")
    if last:
        a("s_waitcnt vmcnt(29)")
        a("s_cmp_ge_u32 s2, 144")
        a(f"s_cbranch_scc0 {L}_ew")
        a("s_waitcnt vmcnt(0)")
        a(f"{L}_ew:")
        for i in range(3):
            ln_consts(a, EST + 2 * i, EST + 2 * i + 1, T, T + 1, T + 2, T + 3, T + 4)
            a(f"v_rcp_f32 v{T+3}, v{T+3}")
            for p in range(4):
                x = EW + 4 * i + p
                lo, hi, t2, t3, t4 = T + 5, T + 6, T + 7, T + 8, T + 9
                a(f"v_lshlrev_b32 v{lo}, 16, v{x}")
                a(f"v_and_b32 v{hi}, 0xffff0000, v{x}")
                a(f"v_sub_f32 v{t2}, v{lo}, v{T+2}")
                a(f"v_sub_f32 v{t3}, v{hi}, v{T+2}")
                a(f"v_cvt_pk_bf16_f32 v{t4}, v{t2}, v{t3}")
                a(f"v_lshlrev_b32 v{t2}, 16, v{t4}")
                a(f"v_and_b32 v{t3}, 0xffff0000, v{t4}")
                a(f"v_mul_f32 v{t2}, v{t2}, v{T+3}")
                a(f"v_mul_f32 v{t3}, v{t3}, v{T+3}")
                a(f"v_cvt_pk_bf16_f32 v{t4}, v{t2}, v{t3}")
                a(f"v_lshlrev_b32 v{t2}, 16, v{t4}")
                a(f"v_and_b32 v{t3}, 0xffff0000, v{t4}")
                a(f"v_add_f32 v{t2}, v{t2}, v{lo}")
                a(f"v_add_f32 v{t3}, v{t3}, v{hi}")
                a(f"v_cvt_pk_bf16_f32 v{x}, v{t2}, v{t3}")
            a(f"v_cmp_ne_u32 vcc, s31, v{218+i}")
            if i == 2:
                a("v_cmp_gt_u32 s[38:39], 64, v0")
                a("s_and_b64 vcc, vcc, s[38:39]")
            a("s_and_saveexec_b64 s[38:39], vcc")
            a(f"s_cbranch_execz {L}_sk{i}")
            a(f"global_store_dwordx4 v{11+i}, {vr(EW+4*i,4)}, s[14:15]")
            a(f"{L}_sk{i}:")
            a("s_mov_b64 exec, s[38:39]")
        a("s_cmp_ge_u32 s2, 144")
        a(f"s_cbranch_scc1 {L}_end")
    a("v_lshlrev_b32 v14, 1, v4")
    for i in range(9):
        a(f"global_load_short_d16_hi v{XS+2*i+1}, v14, s[36:37] offset:{i*128}")
    a("s_waitcnt lgkmcnt(0)")
    T = ST
    a(f"v_mov_b32 v{T}, s34")
    a(f"v_mov_b32 v{T+1}, s35")
    ln_consts(a, T, T + 1, T + 2, T + 3, T + 4, T + 5, T + 6)
    a(f"v_rcp_f32 v{T+5}, v{T+5}")
    a("s_and_b32 s6, s30, 0xffff0000")
    a("s_ashr_i32 s7, s6, 31")
    a("s_not_b32 s7, s7")
    a("s_or_b32 s7, s7, 0x80000000")
    a("s_xor_b32 s6, s6, s7")
    a("s_and_b32 s6, s6, 0xffff0000")
    a(f"v_mov_b32 v{T+7}, s6")
    a(f"v_mul_f32 v{T+7}, {f32(-math.log2(math.e))}, v{T+7}")
    a(f"v_exp_f32 v{T+7}, v{T+7}")
    a(f"v_add_f32 v{T+7}, 1.0, v{T+7}")
    a(f"v_rcp_f32 v{T+7}, v{T+7}")
    rne(a, T + 7, T + 7)
    a(f"v_readfirstlane_b32 s40, v{T+7}")
    for r in range(16):
        a(f"v_mov_b32 v{AC+r}, 0")
    a("s_waitcnt vmcnt(0)")
    for i in range(9):
        x = XS + 2 * i + 1
        a(f"v_and_b32 v{x}, 0xffff0000, v{x}")
        a(f"v_sub_f32 v{x}, v{x}, v{T+4}")
        rne(a, x, x)
        a(f"v_mul_f32 v{x}, v{x}, v{T+5}")
        rne(a, x, x)
        a(f"v_lshrrev_b32 v{x-1}, 16, v{x}")
    for i in range(9):
        for d in range(8):
            w = WGU + 8 * i + d
            a(f"v_dot2c_f32_bf16 v{AC+2*d}, v{w}, v{XS+2*i}")
            a(f"v_dot2c_f32_bf16 v{AC+2*d+1}, v{w}, v{XS+2*i+1}")
    a("s_nop 2")
    for sh in (4, 8):
        for r in range(16):
            a(f"v_add_f32_dpp v{AC+r}, v{AC+r}, v{AC+r} row_shr:{sh} row_mask:0xf bank_mask:0xf")
    a("v_lshlrev_b32 v14, 9, v5")
    a("v_lshrrev_b32 v15, 4, v0")
    a("v_lshl_add_u32 v14, v15, 2, v14")
    a("s_mov_b32 exec_lo, 0xf000f000")
    a("s_mov_b32 exec_hi, 0xf000f000")
    for r in range(16):
        m, e = r >> 3, r & 7
        a(f"ds_write_b32 v14, v{AC+r} offset:{F_LDS_GU + (m*32 + e)*64}")
    a("s_mov_b64 exec, -1")
    a("s_waitcnt lgkmcnt(0)")
    a("s_barrier")
    a("v_lshlrev_b32 v14, 6, v1")
    for r in range(4):
        a(f"ds_read_b128 {vr(AC+4*r,4)}, v14 offset:{F_LDS_GU + 16*r}")
    a("s_waitcnt lgkmcnt(0)")
    for st in (8, 4, 2, 1):
        for r in range(st):
            a(f"v_add_f32 v{AC+r}, v{AC+r}, v{AC+r+st}")
    rne(a, AC, AC)
    a(f"v_mov_b32 v{AC+1}, v{AC}")
    a(f"v_permlane32_swap_b32 v{AC}, v{AC+1}")
    a(f"v_mul_f32 v{AC+2}, {f32(-math.log2(math.e))}, v{AC}")
    a(f"v_exp_f32 v{AC+2}, v{AC+2}")
    a(f"v_add_f32 v{AC+2}, 1.0, v{AC+2}")
    a(f"v_rcp_f32 v{AC+2}, v{AC+2}")
    a(f"v_mul_f32 v{AC}, v{AC}, v{AC+2}")
    rne(a, AC, AC)
    a(f"v_mul_f32 v{AC}, v{AC}, v{AC+1}")
    rne(a, AC, AC)
    a("v_lshlrev_b32 v14, 2, v9")
    HH = XS
    for i in range(11):
        a(f"ds_bpermute_b32 v{HH+i}, v14, v{AC} offset:{12*i}")
    for r in range(8):
        a(f"v_mov_b32 v{AC+4+r}, 0")
    a("s_waitcnt lgkmcnt(0)")
    a("v_cmp_eq_u32 vcc, 2, v9")
    a(f"v_cndmask_b32 v{HH+10}, v{HH+10}, 0, vcc")
    for i in range(11):
        a(f"v_lshrrev_b32 v{AC+1}, 16, v{HH+i}")
        for d in range(4):
            w = WD + 4 * i + d
            a(f"v_dot2c_f32_bf16 v{AC+4+2*d+1}, v{w}, v{HH+i}")
        for d in range(4):
            w = WD + 4 * i + d
            a(f"v_dot2c_f32_bf16 v{AC+4+2*d}, v{w}, v{AC+1}")
    a("v_mul_u32_u24 v14, 2304, v7")
    a("v_lshl_add_u32 v14, v8, 5, v14")
    a("v_cmp_gt_u32 vcc, 216, v0")
    a("s_and_saveexec_b64 s[38:39], vcc")
    a(f"ds_write_b128 v14, {vr(AC+4,4)} offset:{F_LDS_Y}")
    a(f"ds_write_b128 v14, {vr(AC+8,4)} offset:{F_LDS_Y+16}")
    a("s_mov_b64 exec, s[38:39]")
    a("s_waitcnt lgkmcnt(0)")
    a("s_barrier")
    a("v_lshlrev_b32 v14, 2, v0")
    a("v_lshlrev_b32 v15, 2, v1")
    for i in range(3):
        for g in range(3):
            a(f"ds_read_b32 v{AC+3*i+g}, v{14 if i < 2 else 15} offset:{F_LDS_Y + g*2304 + i*1024}")
    a("s_and_b32 s6, s2, 7")
    a("s_mul_i32 s6, s6, 2304")
    a(f"s_add_u32 s6, s6, {WS_Y[layer]}")
    a("s_add_u32 s42, s16, s6")
    a("s_addc_u32 s43, s17, 0")
    a("s_waitcnt lgkmcnt(0)")
    for i in range(3):
        a(f"v_add_f32 v{AC+3*i}, v{AC+3*i}, v{AC+3*i+1}")
        a(f"v_add_f32 v{AC+3*i}, v{AC+3*i}, v{AC+3*i+2}")
    a(f"global_atomic_add_f32 v14, v{AC}, s[42:43]")
    a(f"global_atomic_add_f32 v14, v{AC+3}, s[42:43] offset:1024")
    a("s_cmp_lg_u32 s5, 0")
    a(f"s_cbranch_scc1 {L}_na")
    a(f"global_atomic_add_f32 v14, v{AC+6}, s[42:43] offset:2048")
    a(f"{L}_na:")
    if not last:
        a("s_or_b32 s6, s2, s5")
        a(f"s_cbranch_scc1 {L}_end")
        a("v_mov_b32 v14, 16")
        a("v_mov_b32 v16, s31")
        a("v_mov_b32 v17, s40")
        a("s_mov_b64 exec, 1")
        a("global_store_dwordx2 v14, v[16:17], s[20:21]")
    else:
        a("s_waitcnt vmcnt(0)")
        a("s_barrier")
        a("s_cmp_lg_u32 s5, 0")
        a(f"s_cbranch_scc1 {L}_wt")
        a("v_mov_b32 v14, 0")
        a("v_mov_b32 v16, 1")
        a("s_mov_b64 exec, 1")
        a("global_atomic_add v17, v14, v16, s[44:45] sc0")
        a("s_waitcnt vmcnt(0)")
        a(f"ds_write_b32 v14, v17 offset:{F_LDS_MAX}")
        a("s_mov_b64 exec, -1")
        a("s_waitcnt lgkmcnt(0)")
        a(f"{L}_wt:")
        a("s_barrier")
        a("v_mov_b32 v14, 0")
        a(f"ds_read_b32 v17, v14 offset:{F_LDS_MAX}")
        a("s_waitcnt lgkmcnt(0)")
        a("v_readfirstlane_b32 s6, v17")
        a("s_cmp_lg_u32 s6, 143")
        a(f"s_cbranch_scc1 {L}_end")
        a("s_mul_i32 s6, s31, 1152")
        a("s_add_u32 s14, s14, s6")
        a("s_addc_u32 s15, s15, 0")
        Y = WGU
        for half in range(2):
            if half == 1:
                a("s_cmp_lg_u32 s5, 0")
                a(f"s_cbranch_scc1 {L}_end")
                a("s_mov_b32 exec_hi, 0")
                a("v_add_u32 v0, 256, v0")
            a("v_lshlrev_b32 v12, 3, v0")
            a(f"v_add_u32 v12, {WS_Y[layer]}, v12")
            for r in range(NREP):
                if r:
                    a("v_add_u32 v12, 2304, v12")
                a(f"global_load_dwordx2 {vr(Y+2*r,2)}, v12, s[16:17] sc0 sc1")
            a("v_lshlrev_b32 v13, 2, v0")
            a(f"global_load_dword v{Y+16}, v13, s[36:37]")
            a("s_waitcnt vmcnt(0)")
            fix_row(a, Y, Y + 16, T + 4, T + 5, "s40", Y + 20)
            a(f"global_store_dword v13, v{Y+16}, s[14:15]")
    a(f"{L}_end:")
    a("s_endpgm")
    kernels.append((name, 224, 48))


def main():
    a = Asm()
    launches = [
        ("qkv0_kernel", 256, 320, G_LDS),
        ("attn_kernel", 256, 512, KV_BYTES),
        ("oproj0_kernel", 256, 320, G_LDS),
        ("ffn0_kernel", 144, 256, F_LDS),
        ("qkv1_kernel", 256, 320, G_LDS),
        ("attn_kernel", 256, 512, KV_BYTES),
        ("oproj1_kernel", 256, 320, G_LDS),
        ("ffn1_kernel", 256, 256, F_LDS),
    ]
    hdr = open("cdna_kernels/" + NAME + ".s.ref").read().split("\n")
    for l in hdr:
        if l.startswith(";") and "@launch" not in l and "Override" not in l and "grid=ceil" not in l:
            a.raw(l)
    for k, g, b, lds in launches:
        a.raw(f"; @launch kernel={k} grid=({g},1,1) block=({b},1,1) lds={lds}")
    a.raw('.amdgcn_target "amdgcn-amd-amdhsa--gfx950"')
    gemm_kernel(a, "qkv0_kernel", "qkv", 0)
    attn_kernel(a, "attn_kernel")
    gemm_kernel(a, "oproj0_kernel", "o", 0)
    ffn_kernel(a, "ffn0_kernel", 0)
    gemm_kernel(a, "qkv1_kernel", "qkv", 1)
    gemm_kernel(a, "oproj1_kernel", "o", 1)
    ffn_kernel(a, "ffn1_kernel", 1)
    a.raw('.section .rodata,"a"')
    for name, nv, ns in kernels:
        a.raw(".p2align 6")
        a.raw(f".amdhsa_kernel {name}")
        a.raw(f"  .amdhsa_next_free_vgpr {nv}")
        a.raw(f"  .amdhsa_next_free_sgpr {ns}")
        a.raw(f"  .amdhsa_accum_offset {nv}")
        a.raw("  .amdhsa_group_segment_fixed_size 0")
        a.raw("  .amdhsa_kernarg_size 104")
        a.raw("  .amdhsa_user_sgpr_count 2")
        a.raw("  .amdhsa_user_sgpr_kernarg_segment_ptr 1")
        a.raw("  .amdhsa_system_sgpr_workgroup_id_x 1")
        a.raw("  .amdhsa_float_denorm_mode_32 3")
        a.raw(".end_amdhsa_kernel")
    out = sys.argv[1] if len(sys.argv) > 1 else "cdna_kernels/" + NAME + ".s"
    open(out, "w").write(a.text())
    print("written", out, "lines", len(a.lines), "auto nops", a.nops)


main()
```
